```python
import torch

def _softmax(x, axis=-1):
    return torch.softmax(x, dim=axis)
def _gelu(x):
    return torch.nn.functional.gelu(x, approximate="tanh")
def _silu(x):
    return torch.nn.functional.silu(x)
def _sigmoid(x):
    return torch.sigmoid(x)
def _layernorm(x, axis=-1, eps=1e-5):
    m = x.mean(dim=axis, keepdim=True)
    v = x.var(dim=axis, keepdim=True, unbiased=False)
    return (x - m) / torch.sqrt(v + eps)
def _scatter_add(tgt, idx, src, axis=0):
    return tgt.clone().index_add_(axis, idx, src)
def _segment_sum(src, seg, n):
    out = torch.zeros((n,) + src.shape[1:], dtype=src.dtype)
    return out.index_add_(0, seg, src)
def _pad(x, pw):
    flat = tuple(v for pair in reversed(pw) for v in pair)
    return torch.nn.functional.pad(x, flat)

kernel_name = 'sequential_preLN__ssm_conv_s4d__glu_gated_bilinear__prompt'

def setup_inputs():

    _w = (lambda a: (lambda t: t.to(torch.bfloat16) if t.is_floating_point() else t)(torch.as_tensor(a)))
    def _A_setup():
        Bsz, L, D, N = 1, 2048, 576, 128
        return {
            "u": _w((lambda *s: torch.randn(*s, dtype=torch.bfloat16) * 0.05)(Bsz, L, D)),
            "log_A_real": _w((lambda *s: torch.randn(*s, dtype=torch.bfloat16) * 6.4)(D, N) * 0.5),
            "A_imag": _w((lambda *s: torch.randn(*s, dtype=torch.bfloat16) * 0.05)(D, N) * 3.14),
            "C_real": _w((lambda *s: torch.randn(*s, dtype=torch.bfloat16) * 0.05)(D, N) / N ** 0.5),
            "C_imag": _w((lambda *s: torch.randn(*s, dtype=torch.bfloat16) * 0.05)(D, N) / N ** 0.5),
            "log_dt": _w((lambda *s: torch.randn(*s, dtype=torch.bfloat16) * 0.05)(D) * 0.5 - 4.0),
            "D_skip": _w((lambda *s: torch.randn(*s, dtype=torch.bfloat16) * 0.05)(D)),
        }
    _A_in = _A_setup()

    def _B_setup():
        B, S, D, F = 1, 2048, 576, 4608
        return {
            "x": _w((lambda *s: torch.randn(*s, dtype=torch.bfloat16) * 0.05)(B, S, D)),
            "w_gate": _w((lambda *s: torch.randn(*s, dtype=torch.bfloat16) * 0.4)(D, F) * (D ** -0.5)),
            "w_up": _w((lambda *s: torch.randn(*s, dtype=torch.bfloat16) * 0.4)(D, F) * (D ** -0.5)),
            "w_down": _w((lambda *s: torch.randn(*s, dtype=torch.bfloat16) * 0.4)(F, D) * (F ** -0.5)),
        }
    _B_in = _B_setup()

    return {
        "A_u": _A_in["u"],
        "A_log_A_real": _A_in["log_A_real"],
        "A_A_imag": _A_in["A_imag"],
        "A_C_real": _A_in["C_real"],
        "A_C_imag": _A_in["C_imag"],
        "A_log_dt": _A_in["log_dt"],
        "A_D_skip": _A_in["D_skip"],
        "B_x": _B_in["x"],
        "B_w_gate": _B_in["w_gate"],
        "B_w_up": _B_in["w_up"],
        "B_w_down": _B_in["w_down"],
    }

def reference(A_u, A_log_A_real, A_A_imag, A_C_real, A_C_imag, A_log_dt, A_D_skip, B_x, B_w_gate, B_w_up, B_w_down):
    def _A_ref(u, log_A_real, A_imag, C_real, C_imag, log_dt, D_skip):
        L = u.shape[1]
        dt = torch.exp(log_dt)
        A = -torch.exp(log_A_real) + 1j * A_imag
        C = (C_real + 1j * C_imag) * dt[:, None]
        pos = (lambda x, dt: x.to(dt))(torch.arange(L), log_dt.dtype)
        P = torch.exp((A * dt[:, None])[:, :, None] * pos[None, None, :])
        K = 2.0 * torch.einsum("dn,dnl->dl", C, P).real
        L2 = 2 * L
        u_t = (lambda x, *d: x.permute(*d))(u, 0, 2, 1)
        Kf = (lambda x, *a, **k: torch.fft.rfft(x.float(), *a, **k))(K, L2)
        Uf = (lambda x, *a, **k: torch.fft.rfft(x.float(), *a, **k))(u_t, L2)
        y = (lambda x, *a, **k: torch.fft.irfft(x, *a, **k).to(torch.bfloat16))(Uf * Kf[None, :, :], L2)[:, :, :L]
        y = (lambda x, *d: x.permute(*d))(y, 0, 2, 1)
        return y + u * D_skip[None, None, :]

    def _B_ref(x, w_gate, w_up, w_down):
        g = torch.einsum("bsd,df->bsf", x, w_gate)
        u = torch.einsum("bsd,df->bsf", x, w_up)
        h = g * u
        return torch.einsum("bsf,fd->bsd", h, w_down)

    x = A_u
    h = x + _A_ref(_layernorm(x, axis=-1), A_log_A_real, A_A_imag, A_C_real, A_C_imag, A_log_dt, A_D_skip)
    h2 = h + _B_ref(_layernorm(h, axis=-1), B_w_gate, B_w_up, B_w_down)
    return h2
```

```python
NAME = "sequential_preLN__ssm_conv_s4d__glu_gated_bilinear__prompt"
class Asm:
    def __init__(self):
        self.lines = []
        self.launches = []
        self.descs = []
        self.lab = 0
    def __call__(self, s):
        for l in s.strip("\n").split("\n"):
            self.lines.append("    " + l.strip() if not l.strip().endswith(":") else l.strip())
    def label(self, base="L"):
        self.lab += 1
        return f"{base}_{self.lab}"
    def kernel(self, name):
        self.lines.append(f".globl {name}")
        self.lines.append(".p2align 8")
        self.lines.append(f".type {name},@function")
        self.lines.append(f"{name}:")
    def desc(self, name, vgpr, sgpr=102, accum=None, extra=""):
        if accum is None:
            accum = min(256, (vgpr + 3) // 4 * 4)
        self.descs.append(f""".p2align 6
.amdhsa_kernel {name}
  .amdhsa_next_free_vgpr {vgpr}
  .amdhsa_next_free_sgpr {sgpr}
  .amdhsa_accum_offset {accum}
  .amdhsa_group_segment_fixed_size 0
  .amdhsa_kernarg_size 112
  .amdhsa_user_sgpr_count 2
  .amdhsa_user_sgpr_kernarg_segment_ptr 1
  .amdhsa_system_sgpr_workgroup_id_x 1
{extra}.end_amdhsa_kernel""")
    def launch(self, name, grid, block, lds=0):
        self.launches.append(f"; @launch kernel={name} grid=({grid},1,1) block=({block},1,1) lds={lds}")
    def text(self, header=""):
        out = []
        if header:
            out.append(header.rstrip("\n"))
        out += self.launches
        out.append('.amdgcn_target "amdgcn-amd-amdhsa--gfx950"')
        out.append(".text")
        out += self.lines
        out.append('.section .rodata,"a"')
        out += self.descs
        return "\n".join(out) + "\n"
    def srd(self, s, ptr, nbytes):
        self(f"""s_mov_b32 s{s}, s{ptr}
s_and_b32 s{s+1}, s{ptr+1}, 0xffff
s_mov_b32 s{s+2}, {nbytes}
s_mov_b32 s{s+3}, 0x00020000""")
```

```python
import re
REG = re.compile(r"\b([vas])(\d+)\b|\b([vas])\[(\d+):(\d+)\]|\b(vcc|exec|m0|scc)\b")
TRANS = ("v_exp_f32", "v_log_f32", "v_rcp_f32", "v_rsq_f32", "v_sqrt_f32", "v_sin_f32", "v_cos_f32", "v_rcp_iflag_f32",
         "v_exp_f16", "v_rcp_f16")
def regs(tok):
    out = set()
    for m in REG.finditer(tok):
        if m.group(1): out.add((m.group(1), int(m.group(2))))
        elif m.group(3):
            for i in range(int(m.group(4)), int(m.group(5)) + 1): out.add((m.group(3), i))
        else: out.add((m.group(6), 0))
    return out
def split_ops(s):
    ops = []; depth = 0; cur = ""
    for ch in s:
        if ch in "[(": depth += 1
        if ch in "])": depth -= 1
        if ch == "," and depth == 0:
            ops.append(cur.strip()); cur = ""
        else: cur += ch
    if cur.strip(): ops.append(cur.strip())
    return ops
class I:
    def __init__(self, line):
        self.line = line
        t = line.split(";")[0].strip()
        self.is_label = t.endswith(":") or t.startswith(".") or t == ""
        self.op = ""; self.d = set(); self.s = set(); self.kind = "none"; self.states = 0
        if self.is_label: return
        parts = t.split(None, 1)
        op = parts[0]; self.op = op
        rest = parts[1] if len(parts) > 1 else ""
        ops = split_ops(rest)
        self.mods = rest
        self.states = 1
        r = [regs(o) for o in ops]
        allr = set().union(*r) if r else set()
        if op == "s_nop":
            self.kind = "salu"; self.states = int(ops[0], 0) + 1
        elif op.startswith("v_mfma"):
            self.kind = "mfma"; self.d = r[0]; self.A = r[1]; self.B = r[2]; self.C = r[3]; self.s = r[1] | r[2] | r[3]
            self.passes = 8 if "32x32x16" in op else 4 if "16x16x32" in op else 16
            assert "32x32x16" in op or "16x16x32" in op, op
        elif op.startswith("v_"):
            self.kind = "valu"
            base = op.replace("_e32", "").replace("_e64", "").replace("_dpp", "").replace("_sdwa", "")
            self.base = base
            if base.startswith("v_cmp"):
                self.d = r[0]; self.s = set().union(*r[1:])
                if base.startswith("v_cmpx"): self.d = self.d | {("exec", 0)}
            elif base in ("v_add_co_u32", "v_sub_co_u32", "v_subrev_co_u32", "v_addc_co_u32", "v_subb_co_u32", "v_div_scale_f32", "v_mad_u64_u32"):
                self.d = r[0] | r[1]; self.s = set().union(*r[2:])
            elif base.startswith("v_permlane") or base == "v_swap_b32":
                self.d = r[0] | r[1]; self.s = r[0] | r[1]
            elif base == "v_nop":
                pass
            else:
                self.d = r[0]; self.s = set().union(*r[1:]) if len(r) > 1 else set()
                if base.startswith(("v_fmac", "v_dot2c", "v_pk_fmac", "v_writelane")) or "_dpp" in op or "_sdwa" in op:
                    self.s = self.s | r[0]
            self.trans = base in TRANS
            self.dpp = "_dpp" in op or "quad_perm" in rest or "row_" in rest
            self.dl = base.startswith("v_dot")
            self.perm = base.startswith("v_permlane")
            self.rdl = base in ("v_readlane_b32", "v_readfirstlane_b32")
            self.selmove = ("_sdwa" in op and "dst_sel:DWORD" not in rest) or (base in ("v_fma_mixhi_f16", "v_fma_mixlo_f16"))
        elif op.startswith("ds_"):
            self.kind = "ds"
            if op.startswith("ds_read") or op.startswith("ds_bpermute") or op.startswith("ds_swizzle") or op.startswith("ds_permute"):
                self.d = r[0]; self.s = set().union(*r[1:])
                if "d16" in op: self.s = self.s | r[0]
            else:
                self.s = allr
        elif op.startswith(("buffer_", "global_", "flat_")):
            self.kind = "vmem"
            lds = bool(re.search(r"\blds\b", rest)) or "_lds_" in op
            self.lds = lds
            if "load" in op and not lds:
                self.d = r[0]; self.s = set().union(*r[1:])
            elif "atomic" in op and "sc0" in rest:
                self.d = r[0]; self.s = allr
            else:
                self.s = allr
            if lds: self.s = self.s | {("m0", 0)}
            self.wide_store = "store" in op and ("x3" in op or "x4" in op)
            if self.wide_store:
                self.data = r[0] if op.startswith("buffer_") else r[1]
        elif op.startswith("s_"):
            self.kind = "salu"
            if op.startswith(("s_cmp", "s_cbranch", "s_branch", "s_waitcnt", "s_barrier", "s_endpgm", "s_setprio", "s_sleep", "s_bitcmp")):
                self.s = allr
            else:
                self.d = r[0] if r else set(); self.s = set().union(*r[1:]) if len(r) > 1 else set()
                if "saveexec" in op: self.d = self.d | {("exec", 0)}
        else:
            raise ValueError("unknown instr: " + line)
def vec(x): return {r for r in x if r[0] in "va"}
def sc(x): return {r for r in x if r[0] == "s" or r[0] == "vcc"}
def need(p, c):
    n = 0
    if p.kind == "valu":
        pv = vec(p.d); ps = sc(p.d)
        if c.kind == "mfma" and pv & c.s: n = max(n, 3 if p.dl else 2)
        if c.kind == "mfma" and ("exec", 0) in p.d: n = max(n, 4)
        if c.kind == "valu":
            if pv & c.s:
                if p.trans and not c.trans: n = max(n, 1)
                if c.dpp: n = max(n, 2)
                if c.perm: n = max(n, 2)
                if c.rdl: n = max(n, 1)
                if p.selmove: n = max(n, 1)
            if p.dl and pv & (c.s | c.d):
                if not (c.base == p.base and pv == vec(c.d) and c.op == p.op and not (pv & c_ab(c))): n = max(n, 3)
            if ps & c.s:
                n = max(n, 4 if c.base in ("v_readlane_b32", "v_writelane_b32", "v_div_fmas_f32") else 2)
            if ("exec", 0) in p.d and (c.dpp): n = max(n, 5)
            if ("exec", 0) in p.d and (c.rdl or c.perm): n = max(n, 4)
        if c.kind in ("vmem", "ds") and p.dl and pv & c.s: n = max(n, 3)
        if c.kind == "vmem" and ps & c.s: n = max(n, 5)
        if c.kind == "salu" and ps & c.s: n = max(n, 1)
    if p.kind == "mfma":
        big = {4: 8, 8: 12, 16: 20}[p.passes]; mid = {4: 6, 8: 10, 16: 18}[p.passes]; war = {4: 3, 8: 7, 16: 15}[p.passes]
        if c.kind == "mfma":
            if p.d & (c.A | c.B): n = max(n, big)
            if p.d & c.C and not (p.d == c.C and p.passes == c.passes): n = max(n, mid)
            if p.d & c.d and not (p.d == c.d): n = max(n, mid)
            if p.d & c.d and not (p.d & c.C): n = max(n, mid)
        elif c.kind in ("valu", "vmem", "ds"):
            if p.d & (c.s | c.d): n = max(n, big)
            if c.kind == "valu" and p.C & c.d: n = max(n, war)
    if p.kind == "vmem" and getattr(p, "wide_store", False):
        if c.kind in ("valu", "mfma") and p.data & c.d: n = max(n, 2)
        elif p.data & c.d: n = max(n, 1)
    if p.kind == "ds" and p.op in ("ds_write_b128", "ds_write_b96", "ds_write2_b64") :
        if c.kind in ("valu", "mfma") and vec(p.s) & c.d: n = max(n, 2)
    if p.kind == "salu" and ("m0", 0) in p.d and ("m0", 0) in c.s and c.kind in ("vmem", "ds"): n = max(n, 1)
    return n
def c_ab(c):
    t = c.line.split(";")[0].strip().split(None, 1)[1]
    ops = split_ops(t)
    return regs(ops[1]) | regs(ops[2])
def fix(lines, verbose=False):
    out = []; hist = []
    nins = 0
    labels = {}
    for ln in lines:
        ins = I(ln)
        if ins.is_label:
            out.append(ln)
            t = ln.split(";")[0].strip()
            if t.endswith(":"): labels[t[:-1]] = len(hist)
            continue
        req = 0; dist = 0
        for p in reversed(hist[-24:]):
            n = need(p, ins)
            if n > dist: req = max(req, n - dist)
            dist += p.states
            if dist >= 24: break
        while req > 0:
            k = min(req, 16)
            nop = I(f"    s_nop {k-1}")
            out.append(nop.line); hist.append(nop); req -= k; nins += 1
        out.append(ln); hist.append(ins)
        if ins.op in ("s_endpgm",):
            hist.append(I("    s_nop 15")); hist.append(I("    s_nop 15"))
    for idx, ins in enumerate(hist):
        if ins.op.startswith(("s_cbranch", "s_branch")):
            tgt = ins.line.split(";")[0].split()[1]
            if tgt not in labels: continue
            t0 = labels[tgt]
            pre = hist[max(0, idx - 24): idx + 1]
            post = hist[t0: t0 + 24]
            d2 = 0
            for c in post:
                dist = d2
                for p in reversed(pre):
                    n = need(p, c)
                    if n > dist:
                        raise RuntimeError(f"hazard across branch to {tgt}: '{p.line.strip()}' -> '{c.line.strip()}' need {n} have {dist}")
                    dist += p.states
                d2 += c.states
                if c.op.startswith(("s_branch", "s_endpgm")): break
    if verbose: print("inserted nops:", nins)
    return out
```

```python
import sys
sys.path.insert(0, "work")
from asmlib import *
from hazard import fix

UX  = 0x0000000; UX_SZ = 128*576*64
KR  = 0x0480000; KR_SZ = 576*4096
KS  = 0x0900000
CS  = 0x0901000; CS_SZ = 3*576*64
RS2 = 0x0921000
HT  = 0x0A00000; HT_SZ = 576*4096
WGU = 0x1000000; WGU_SZ = 576*18*1024
WD  = 0x2000000; WD_SZ = 8*72*9216
HID = 0x3000000; HID_SZ = 2048*4608*2
WS_USED = 0x4400000
LOG2E = 0x3fb8aa3b
INV2PI = 0x3e22f983

a = Asm()

def ws_srd(s, off, size, wsptr):
    a(f"""s_add_u32 s{s}, s{wsptr}, {off}
s_addc_u32 s{s+1}, s{wsptr+1}, 0
s_and_b32 s{s+1}, s{s+1}, 0xffff
s_mov_b32 s{s+2}, {size}
s_mov_b32 s{s+3}, 0x00020000""")

def rbf1(dst, src):
    a(f"v_cvt_pk_bf16_f32 v{dst}, 0, v{src}")

LN_P = 1184; LN_XO = 19200
def role_ln1():
    a("""s_load_dwordx2 s[4:5], s[0:1], 0
s_load_dwordx2 s[6:7], s[0:1], 104
v_lshrrev_b32 v1, 4, v0
v_and_b32 v2, 15, v0
v_mul_u32_u24 v3, 1152, v1
v_lshl_add_u32 v3, v2, 3, v3
s_mul_i32 s16, s3, 18432
s_waitcnt lgkmcnt(0)""")
    a.srd(8, 4, 2048*1152)
    for j in range(9):
        a(f"buffer_load_dwordx2 v[{10+2*j}:{11+2*j}], v3, s[8:11], s16 offen offset:{128*j}")
    ws_srd(12, UX, UX_SZ, 6)
    a(f"""v_mul_u32_u24 v6, {LN_P}, v1
v_lshrrev_b32 v7, 3, v1
v_lshl_add_u32 v6, v7, 7, v6
v_lshl_add_u32 v6, v2, 3, v6
s_mov_b32 s20, 0x3f803f80
s_mov_b32 s21, 0xffff0000
v_mov_b32 v4, 0
v_mov_b32 v5, 0""")
    a(f"""v_and_b32 v40, 63, v0
v_lshrrev_b32 v41, 6, v0
v_lshrrev_b32 v42, 4, v40
v_and_b32 v43, 15, v40
v_lshrrev_b32 v44, 1, v42
v_mul_u32_u24 v8, {LN_XO}, v44
v_and_b32 v44, 1, v42
v_mul_u32_u24 v45, {8*LN_P+128}, v44
v_add_u32 v8, v8, v45
v_lshrrev_b32 v44, 2, v43
v_mul_u32_u24 v45, {LN_P}, v44
v_add_u32 v8, v8, v45
v_and_b32 v44, 3, v43
v_lshl_add_u32 v8, v44, 3, v8
v_lshl_add_u32 v8, v41, 5, v8
v_lshlrev_b32 v9, 6, v43
v_lshl_add_u32 v9, v42, 4, v9
v_lshl_add_u32 v9, v41, 10, v9
s_mul_i32 s17, s3, 36864""")
    for j in range(9):
        a(f"s_waitcnt vmcnt({8-j})")
        for q in range(2):
            a(f"v_dot2_f32_bf16 v4, v{10+2*j+q}, s20, v4")
            a(f"v_dot2_f32_bf16 v5, v{10+2*j+q}, v{10+2*j+q}, v5")
        a(f"ds_write_b64 v6, v[{10+2*j}:{11+2*j}] offset:{LN_XO+128*j}")
    for sh in (8, 4, 2, 1):
        a(f"v_add_f32_dpp v4, v4, v4 row_ror:{sh} row_mask:0xf bank_mask:0xf")
        a(f"v_add_f32_dpp v5, v5, v5 row_ror:{sh} row_mask:0xf bank_mask:0xf")
    inv576 = "0x3ae38e39"
    a(f"""v_mul_f32 v4, {inv576}, v4
v_mul_f32 v5, {inv576}, v5
v_fma_f32 v5, -v4, v4, v5
v_max_f32 v5, 0, v5
v_cvt_pk_bf16_f32 v7, v4, v5
v_lshlrev_b32 v30, 16, v7
v_and_b32 v5, s21, v7
v_add_f32 v5, 0x3727c5ac, v5""")
    rbf1(5, 5)
    a("v_sqrt_f32 v5, v5")
    rbf1(5, 5)
    a("v_rcp_f32 v32, v5")
    for j in range(18):
        x = 10 + j; t = 50 + 2*(j % 4); u = 60 + j
        a(f"""v_lshlrev_b32 v{t}, 16, v{x}
v_and_b32 v{t+1}, s21, v{x}
v_pk_add_f32 v[{t}:{t+1}], v[{t}:{t+1}], v[30:31] op_sel_hi:[1,0] neg_lo:[0,1] neg_hi:[0,1]
v_cvt_pk_bf16_f32 v{t}, 0, v{t}
v_cvt_pk_bf16_f32 v{t+1}, 0, v{t+1}
v_pk_mul_f32 v[{t}:{t+1}], v[{t}:{t+1}], v[32:33] op_sel_hi:[1,0]
v_cvt_pk_bf16_f32 v{t}, 0, v{t}
v_cvt_pk_bf16_f32 v{t+1}, 0, v{t+1}
v_cvt_pk_f16_f32 v{u}, v{t}, v{t+1}""")
        if j % 2 == 1:
            a(f"ds_write_b64 v6, v[{u-1}:{u}] offset:{128*(j//2)}")
    a("s_waitcnt lgkmcnt(0)\ns_barrier")
    for i in range(9):
        r = 12 + 4*i
        a(f"ds_read_b64_tr_b16 v[{r}:{r+1}], v8 offset:{128*i}")
        a(f"ds_read_b64_tr_b16 v[{r+2}:{r+3}], v8 offset:{128*i+4*LN_P}")
    for i in range(9):
        r = 12 + 4*i
        a(f"s_waitcnt lgkmcnt({min(15, 16-2*i)})")
        a(f"buffer_store_dwordx4 v[{r}:{r+3}], v9, s[12:15], s17 offen sc1")
        a("s_add_u32 s17, s17, 4096")
    a("s_endpgm")

KG_P = 544; KG_T = 57*KG_P; KG_TAB = 2*KG_T; KG_TABSZ = 1552
def cmul(d, x, y):
    a(f"v_pk_mul_f32 v[{d}:{d+1}], v[{x}:{x+1}], v[{y}:{y+1}] op_sel:[0,0] op_sel_hi:[0,1]")
    a(f"v_pk_fma_f32 v[{d}:{d+1}], v[{x}:{x+1}], v[{y}:{y+1}], v[{d}:{d+1}] op_sel:[1,1,0] op_sel_hi:[1,0,1] neg_lo:[1,0,0]")
def role_kgen():
    a("""s_load_dwordx8 s[4:11], s[0:1], 8
s_load_dwordx2 s[12:13], s[0:1], 40
s_load_dwordx2 s[14:15], s[0:1], 104
v_lshrrev_b32 v1, 6, v0
v_and_b32 v2, 63, v0
v_readfirstlane_b32 s16, v1
s_lshr_b32 s17, s16, 1
s_and_b32 s18, s16, 1
s_lshl_b32 s19, s3, 1
s_add_u32 s19, s19, s17
s_lshl_b32 s20, s19, 8
v_lshl_add_u32 v3, v2, 2, s20
s_lshl_b32 s21, s3, 2
s_waitcnt lgkmcnt(0)
global_load_dword v4, v3, s[4:5]
global_load_dword v5, v3, s[6:7]
global_load_dword v6, v3, s[8:9]
global_load_dword v7, v3, s[10:11]
s_load_dword s22, s[12:13], s21""")
    a("""v_lshlrev_b32 v8, 3, v0
v_sub_u32 v8, 2047, v8
v_cmp_gt_u32 vcc, 224, v0
s_mov_b32 s23, 0xffff
s_mov_b32 s24, 0xffff0000""")
    for e in range(0, 8, 2):
        a(f"""v_subrev_u32 v9, {e}, v8
v_subrev_u32 v10, {e+1}, v8
v_cvt_f32_u32 v11, v9
v_cvt_f32_u32 v12, v10
v_cvt_pk_bf16_f32 v11, v11, v12
v_and_b32 v12, s23, v11
v_lshrrev_b32 v11, 16, v11
v_subrev_u32 v12, 0x4280, v12
v_subrev_u32 v11, 0x4280, v11
v_cndmask_b32 v9, v9, v12, vcc
v_cndmask_b32 v10, v10, v11, vcc
v_lshlrev_b32 v{100+e}, 1, v9
v_lshlrev_b32 v{101+e}, 1, v10""")
    a(f"""s_mul_i32 s25, s17, {KG_T}
s_lshl_b32 s26, s18, 8
s_add_u32 s26, s26, s25
v_lshl_add_u32 v13, v2, 2, s26
v_and_b32 v15, 15, v2
v_lshrrev_b32 v16, 4, v2
v_mul_u32_u24 v14, {KG_P}, v15
v_lshl_add_u32 v14, v16, 4, v14
v_add_u32 v14, s25, v14
s_lshl_b32 s27, s18, 4
s_sub_u32 s27, 16, s27
s_lshl_b32 s28, s17, 4
s_waitcnt lgkmcnt(0)
s_lshr_b32 s22, s22, s28
s_lshl_b32 s22, s22, 16
v_mov_b32 v17, {LOG2E}
v_mul_f32 v17, s22, v17
v_exp_f32 v17, v17""")
    rbf1(17, 17)
    ws_srd(32, KR, KR_SZ, 14)
    ws_srd(36, KS, 576*4, 14)
    a("s_waitcnt vmcnt(0)")
    a("""v_lshlrev_b32 v18, 16, v6
v_and_b32 v19, s24, v6
v_lshlrev_b32 v20, 16, v7
v_and_b32 v21, s24, v7
v_max3_f32 v18, |v18|, |v19|, |v20|
v_max_f32 v18, v18, |v21|""")
    for r in (4, 5, 6, 7):
        a(f"v_lshlrev_b32 v{r}, s27, v{r}")
        a(f"v_and_b32 v{r}, s24, v{r}")
    for sh in (8, 4, 2, 1):
        a(f"v_max_f32_dpp v18, v18, v18 row_ror:{sh} row_mask:0xf bank_mask:0xf")
    a(f"""v_mul_f32 v4, {LOG2E}, v4
v_exp_f32 v4, v4
v_mov_b32 v19, v18
v_permlane16_swap_b32 v18, v19
v_max_f32 v18, v18, v19
v_mov_b32 v19, v18
v_permlane32_swap_b32 v18, v19
v_max_f32 v18, v18, v19
v_frexp_exp_i32_f32 v19, v18
v_sub_u32 v20, 0, v19
v_ldexp_f32 v30, v6, v20
v_ldexp_f32 v31, v7, v20
v_add_u32 v19, 1, v19
v_ldexp_f32 v21, v17, v19""")
    rbf1(4, 4)
    a(f"""v_mul_f32 v4, v4, v17
v_mul_f32 v5, v5, v17
v_mul_f32 v4, {LOG2E | 0x80000000}, v4
v_mul_f32 v5, {INV2PI}, v5""")
    a("""s_lshl_b32 s29, s19, 2
v_mov_b32 v22, 4096
v_cmp_eq_u32 vcc, 0, v2
v_cndmask_b32 v22, v22, v2, vcc
buffer_store_dword v21, v22, s[36:39], s29 offen""")
    for dst, p in ((32, "1.0"), (34, "0x41000000"), (36, "0x43000000")):
        a(f"""v_mul_f32 v24, {p}, v4
v_mul_f32 v25, {p}, v5
v_exp_f32 v24, v24
v_fract_f32 v25, v25
v_cos_f32 v26, v25
v_sin_f32 v27, v25
v_mul_f32 v{dst}, v24, v26
v_mul_f32 v{dst+1}, v24, v27""")
    tmpc = [0]
    def emit_row(row, z, neg=False):
        t = 90 + tmpc[0] % 8; tmpc[0] += 1
        a(f"v_cvt_pk_f16_f32 v{t}, v{z}, {'-' if neg else ''}v{z+1}")
        a(f"ds_write_b32 v13, v{t} offset:{row*KG_P}")
    S1 = []; S2 = []; S3 = []
    cur = 30
    S1.append(lambda cur=cur: emit_row(41, cur, True))
    for j in range(1, 16):
        nxt = 28 if cur == 30 else 30
        S1.append(lambda cur=cur, nxt=nxt, j=j: (cmul(nxt, cur, 34), emit_row(41+j, nxt, True)))
        cur = nxt
    Ec = {1: 32}
    for c in range(2, 8): Ec[c] = 40 + 2*(c-2)
    def row_one():
        a("v_mov_b32 v89, 0x3c00")
        a("ds_write_b32 v13, v89 offset:0")
    S2.append(row_one)
    S2.append(lambda: emit_row(1, 32))
    S2.append(lambda: emit_row(8, 36))
    for c in range(2, 8):
        S2.append(lambda c=c: (cmul(Ec[c], Ec[c-1], 32), emit_row(c, Ec[c])))
    pt = [0]
    def prod(row, g, c):
        t = 60 + 2*(pt[0] % 4); pt[0] += 1
        cmul(t, g, Ec[c]); emit_row(row, t)
    for c in range(1, 8):
        S2.append(lambda c=c: prod(8+c, 36, c))
    Gr = {1: 36}
    for aa in range(2, 8): Gr[aa] = 70 + 2*(aa-2)
    for aa in range(8, 17): Gr[aa] = 82 + 2*(aa % 2)
    def growfor(aa):
        if aa in (2, 3): return 16 + 4*(aa-2)
        if aa < 8: return 24 + 2*(aa-4)
        return 32 + (aa-8)
    for aa in range(2, 17):
        S3.append(lambda aa=aa: (cmul(Gr[aa], Gr[aa-1], 36), emit_row(growfor(aa), Gr[aa])))
    S4 = []
    for aa in (2, 3):
        for ci, c in enumerate((2, 4, 6)):
            S4.append(lambda aa=aa, ci=ci, c=c: prod(16 + 4*(aa-2) + 1 + ci, Gr[aa], c))
    for aa in (4, 5, 6, 7):
        S4.append(lambda aa=aa: prod(24 + 2*(aa-4) + 1, Gr[aa], 4))
    n = max(len(S1), len(S2), len(S3))
    for i in range(n):
        for S in (S1, S2, S3):
            if i < len(S): S[i]()
    for f in S4: f()
    a(f"""s_mul_i32 s30, s17, {KG_TABSZ}
s_add_u32 s30, s30, {KG_TAB}
v_lshrrev_b32 v44, 1, v16
v_and_b32 v45, 1, v16
v_lshlrev_b32 v40, 8, v44
v_lshl_add_u32 v40, v45, 3, v40
v_lshl_add_u32 v40, v15, 4, v40
v_add_u32 v40, s30, v40
v_sub_u32 v46, 3, v44
v_lshlrev_b32 v41, v46, v15
v_lshl_add_u32 v41, v16, 7, v41
v_add_u32 v41, s30, v41
v_mul_u32_u24 v42, 60, v44
v_add3_u32 v42, v42, v41, 4
v_lshlrev_b32 v43, 7, v16
v_lshl_add_u32 v43, v15, 1, v43
v_add_u32 v43, s30, v43
s_lshl_b32 s31, s18, 1
s_mul_i32 s31, s31, {16*KG_P}
v_add_u32 v47, s31, v14
s_waitcnt lgkmcnt(0)
s_barrier""")
    for s in range(8):
        a(f"ds_read_b128 v[{48+4*s}:{51+4*s}], v14 offset:{41*KG_P+64*s}")
        a(f"ds_read_b128 v[{112+4*s}:{115+4*s}], v47 offset:{64*s}")
    L2 = a.label("KG_T2"); LJ = a.label("KG_J")
    a(f"s_cmp_lg_u32 s18, 0\ns_cbranch_scc1 {L2}")
    for s in range(8):
        a(f"s_waitcnt lgkmcnt({min(15, 14-2*s+s)})")
        a(f"v_mfma_f32_16x16x32_f16 v[80:83], v[{112+4*s}:{115+4*s}], v[{48+4*s}:{51+4*s}], {'0' if s == 0 else 'v[80:83]'}")
        a(f"ds_read_b128 v[{144+4*s}:{147+4*s}], v14 offset:{16*KG_P+64*s}")
    for s in range(8):
        a(f"s_waitcnt lgkmcnt({7-s})")
        a(f"v_mfma_f32_16x16x32_f16 v[84:87], v[{144+4*s}:{147+4*s}], v[{48+4*s}:{51+4*s}], {'0' if s == 0 else 'v[84:87]'}")
    a("""v_cvt_pk_f16_f32 v88, v80, v81
v_cvt_pk_f16_f32 v89, v82, v83
ds_write_b64 v40, v[88:89]
v_cvt_pk_f16_f32 v90, v84, v85
v_cvt_pk_f16_f32 v91, v86, v87
ds_write_b32 v41, v90 offset:512
ds_write_b32 v42, v91 offset:512""")
    a(f"s_branch {LJ}")
    a(f"{L2}:")
    for s in range(8):
        a(f"s_waitcnt lgkmcnt({14-2*s})")
        a(f"v_mfma_f32_16x16x32_f16 v[80:83], v[{112+4*s}:{115+4*s}], v[{48+4*s}:{51+4*s}], {'0' if s == 0 else 'v[80:83]'}")
    a("""v_cvt_pk_f16_f32 v88, v80, v81
v_cvt_pk_f16_f32 v89, v82, v83
ds_write_b16 v43, v88 offset:1024
ds_write_b16_d16_hi v43, v88 offset:1056
ds_write_b16 v43, v89 offset:1088
ds_write_b16_d16_hi v43, v89 offset:1120""")
    a(f"{LJ}:")
    a("s_waitcnt lgkmcnt(0)\ns_barrier")
    for ch in range(2):
        for e in range(8):
            a(f"ds_read_u16 v{60+8*ch+e}, v{100+e} offset:{KG_TAB+ch*KG_TABSZ}")
    a("""v_lshlrev_b32 v3, 4, v0
s_lshl_b32 s29, s3, 13
s_add_u32 s28, s29, 4096""")
    for ch in range(2):
        a(f"s_waitcnt lgkmcnt({8-8*ch})")
        for q in range(4):
            a(f"v_lshl_or_b32 v{48+4*ch+q}, v{61+8*ch+2*q}, 16, v{60+8*ch+2*q}")
        a(f"buffer_store_dwordx4 v[{48+4*ch}:{51+4*ch}], v3, s[32:35], s{29-ch} offen sc1")
    a("s_endpgm")

def role_prep_gu():
    a(f"""s_load_dwordx4 s[4:7], s[0:1], 64
s_load_dwordx2 s[14:15], s[0:1], 104
s_mul_hi_u32 s16, s3, {-(-(1<<32)//72)}
s_mul_i32 s17, s16, 72
s_sub_u32 s17, s3, s17
v_lshrrev_b32 v1, 3, v0
v_and_b32 v2, 7, v0
v_mul_u32_u24 v3, 9216, v1
v_lshl_add_u32 v3, v2, 4, v3
s_mul_i32 s18, s16, {192*9216}
s_lshl_b32 s19, s17, 7
s_add_u32 s18, s18, s19
s_waitcnt lgkmcnt(0)""")
    a.srd(20, 4, 576*9216)
    a.srd(24, 6, 576*9216)
    for j in range(6):
        a(f"buffer_load_dwordx4 v[{16+8*j}:{19+8*j}], v3, s[20:23], s18 offen")
        a(f"buffer_load_dwordx4 v[{20+8*j}:{23+8*j}], v3, s[24:27], s18 offen")
        a(f"s_add_u32 s18, s18, {32*9216}")
    ws_srd(28, WGU, WGU_SZ, 14)
    ws_srd(32, CS, CS_SZ, 14)
    a("""v_mul_u32_u24 v4, 288, v1
v_lshl_add_u32 v4, v2, 5, v4
v_and_b32 v7, 63, v0
v_lshrrev_b32 v8, 6, v0
v_lshrrev_b32 v9, 2, v7
v_mul_u32_u24 v5, 288, v9
v_and_b32 v9, 3, v7
v_lshl_add_u32 v5, v9, 3, v5
v_lshl_add_u32 v5, v8, 6, v5
v_lshlrev_b32 v6, 4, v7
v_readfirstlane_b32 s36, v8
s_mov_b32 s44, 0x3f803f80""")
    for i in range(2):
        a(f"""s_lshl_b32 s37, s17, 3
s_lshl_b32 s38, s36, 1
s_add_u32 s37, s37, s38
s_add_u32 s37, s37, {i}
s_mul_hi_u32 s38, s37, {-(-(1<<32)//3)}
s_mul_i32 s39, s38, 3
s_sub_u32 s39, s37, s39
s_mul_i32 s38, s38, 18
s_mul_i32 s45, s16, 6
s_add_u32 s38, s38, s45
s_mul_i32 s38, s38, 3072
s_lshl_b32 s39, s39, 10
s_add_u32 s{40+i}, s38, s39
s_lshl_b32 s37, s37, 6
s_mul_i32 s45, s16, 36864
s_add_u32 s{42+i}, s37, s45""")
    for j in range(6):
        b = 16 + 8*j
        a(f"s_waitcnt vmcnt({10-2*j})")
        a(f"""v_swap_b32 v{b+1}, v{b+4}
v_swap_b32 v{b+2}, v{b+4}
v_swap_b32 v{b+3}, v{b+5}
v_swap_b32 v{b+5}, v{b+6}
ds_write_b128 v4, v[{b}:{b+3}] offset:{9216*j}
ds_write_b128 v4, v[{b+4}:{b+7}] offset:{9216*j+16}""")
    a("v_mov_b32 v10, 0\nv_mov_b32 v11, 0")
    a("s_waitcnt lgkmcnt(0)\ns_barrier")
    fr = [(i, ks) for i in range(2) for ks in range(6)]
    def rd(n):
        i, ks = fr[n]; r = 16 + 4*n
        a(f"ds_read_b64_tr_b16 v[{r}:{r+1}], v5 offset:{9216*ks+32*i}")
        a(f"ds_read_b64_tr_b16 v[{r+2}:{r+3}], v5 offset:{9216*ks+32*i+4608}")
    for n in range(6): rd(n)
    for n in range(12):
        i, ks = fr[n]; r = 16 + 4*n
        if n + 6 < 12: rd(n + 6)
        a(f"s_waitcnt lgkmcnt({2*min(6, 11-n)})")
        a(f"buffer_store_dwordx4 v[{r}:{r+3}], v6, s[28:31], s{40+i} offen sc1")
        a(f"s_add_u32 s{40+i}, s{40+i}, 3072")
        for q in range(4):
            a(f"v_dot2_f32_bf16 v{10+i}, v{r+q}, s44, v{10+i}")
    for i in range(2):
        a(f"""v_mov_b32 v12, v{10+i}
v_permlane16_swap_b32 v{10+i}, v12
v_add_f32 v{10+i}, v{10+i}, v12
v_mov_b32 v12, v{10+i}
v_permlane32_swap_b32 v{10+i}, v12
v_add_f32 v{10+i}, v{10+i}, v12""")
    a(f"""v_cmp_gt_u32 vcc, 16, v7
v_cndmask_b32 v10, v11, v10, vcc
v_lshlrev_b32 v13, 2, v7
v_mov_b32 v12, {CS_SZ}
v_cmp_gt_u32 vcc, 32, v7
v_cndmask_b32 v13, v12, v13, vcc
buffer_store_dword v10, v13, s[32:35], s42 offen
s_endpgm""")

CV_P1 = 4160; CV_UB = 8320; CV_XB = CV_UB + 512 + 4096; CV_SZ = CV_XB + 4096
def role_conv():
    a(f"""s_load_dwordx2 s[4:5], s[0:1], 48
s_load_dwordx2 s[6:7], s[0:1], 104
v_lshrrev_b32 v1, 6, v0
v_and_b32 v2, 63, v0
v_readfirstlane_b32 s16, v1
v_lshrrev_b32 v3, 4, v0
v_mul_u32_u24 v3, 36864, v3
v_and_b32 v4, 15, v0
v_lshl_add_u32 v3, v4, 4, v3
v_lshlrev_b32 v5, 4, v2
s_lshl_b32 s17, s3, 2
s_add_u32 s17, s17, s16
s_lshl_b32 s18, s3, 8
s_lshl_b32 s19, s17, 12
s_waitcnt lgkmcnt(0)""")
    a(f"""s_add_u32 s19, s19, {KR}
s_add_u32 s8, s6, s19
s_addc_u32 s9, s7, 0
s_and_b32 s9, s9, 0xffff
s_mov_b32 s10, 4096
s_mov_b32 s11, 0x00020000""")
    ws_srd(12, UX, UX_SZ, 6)
    for j in range(4):
        a(f"buffer_load_dwordx4 v[{64+4*j}:{67+4*j}], v5, s[8:11], 0 offen offset:{1024*j}")
        a(f"buffer_load_dword v{80+j}, v5, s[8:11], 0 offen offset:{1024*j+16}")
    for j in range(8):
        a(f"buffer_load_dwordx4 v[{128+4*j}:{131+4*j}], v3, s[12:15], s18 offen")
        a(f"s_add_u32 s18, s18, {16*36864}")
    a(f"""s_lshr_b32 s22, s17, 1
s_lshl_b32 s22, s22, 2
s_load_dword s20, s[4:5], s22
s_add_u32 s24, s6, {KS}
s_addc_u32 s25, s7, 0
s_lshl_b32 s22, s17, 2
s_load_dword s21, s[24:25], s22
s_mul_i32 s26, s16, {CV_SZ}""")
    ws_srd(28, HT, HT_SZ, 6)
    a(f"""v_lshrrev_b32 v6, 2, v4
v_mul_u32_u24 v6, {CV_SZ}, v6
v_and_b32 v7, 1, v0
v_lshl_add_u32 v6, v7, 4, v6
v_bfe_u32 v7, v0, 1, 1
v_mul_u32_u24 v7, 4096, v7
v_add_u32 v6, v6, v7
v_lshrrev_b32 v7, 4, v0
v_lshl_add_u32 v6, v7, 5, v6
v_add_u32 v8, s26, v5
v_mov_b32 v10, 0
v_mov_b32 v11, 0
v_lshl_add_u32 v9, v2, 3, s26
ds_write_b64 v9, v[10:11] offset:{CV_UB}
v_bfe_u32 v7, v2, 3, 1
v_mul_u32_u24 v7, {CV_P1}, v7
v_and_b32 v12, 7, v2
v_lshl_add_u32 v7, v12, 2, v7
v_add_u32 v7, s26, v7
ds_write_b32 v7, v10 offset:4096
v_lshrrev_b32 v13, 4, v2
v_lshlrev_b32 v14, 3, v13
v_sub_u32 v14, v14, v4
v_add_u32 v14, 15, v14
v_and_b32 v15, 1, v14
v_mul_u32_u24 v15, {CV_P1}, v15
v_lshrrev_b32 v14, 1, v14
v_lshl_add_u32 v15, v14, 2, v15
v_add_u32 v19, s26, v15
v_add_u32 v18, 1024, v19
v_add_u32 v17, 2048, v19
v_add_u32 v16, 3072, v19
v_lshlrev_b32 v20, 5, v4
v_lshl_add_u32 v21, v13, 3, v20
v_lshl_add_u32 v20, v13, 4, v20
v_add_u32 v20, s26, v20
v_add_u32 v21, s26, v21
v_and_b32 v22, 1, v13
v_lshlrev_b32 v22, 9, v22
v_lshl_add_u32 v22, v4, 5, v22
v_lshrrev_b32 v23, 1, v13
v_lshl_add_u32 v22, v23, 4, v22
s_lshl_b32 s27, s17, 12
s_mov_b32 s23, 0xffff0000""")
    for j in range(4):
        a(f"s_waitcnt vmcnt({14-2*j})")
        c = 64 + 4*j; o = 96 + 4*j
        a(f"ds_write_b128 v8, v[{c}:{c+3}] offset:{1024*j}")
        for q in range(4):
            nx = c + q + 1 if q < 3 else 80 + j
            a(f"v_alignbit_b32 v{o+q}, v{nx}, v{c+q}, 16")
        a(f"ds_write_b128 v8, v[{o}:{o+3}] offset:{CV_P1+1024*j}")
    for j in range(8):
        a(f"s_waitcnt vmcnt({7-j})")
        a(f"ds_write_b128 v6, v[{128+4*j}:{131+4*j}] offset:{CV_UB+512+512*j}")
    a("""s_and_b32 s22, s17, 1
s_lshl_b32 s22, s22, 4
s_waitcnt lgkmcnt(0)
s_lshr_b32 s20, s20, s22
s_lshl_b32 s20, s20, 16
s_barrier""")
    ACC = 32; AF = (64, 96); BF = (128, 160); BASE = 192; TU = 224; TX = 232; OUT = 240
    def reads(it):
        d0 = 2*it; st = it % 2; L = []
        for r in range(8):
            w = 7 - r if False else r
            o = 112 - 8*d0 + 128*(1 - (r & 1)); ar = AF[st] + 4*r; br = BF[st] + 4*r
            L.append(f"ds_read2_b32 v[{ar}:{ar+1}], v{16+(r>>1)} offset0:{o} offset1:{o+1}")
            L.append(f"ds_read2_b32 v[{ar+2}:{ar+3}], v{16+(r>>1)} offset0:{o+2} offset1:{o+3}")
            L.append(f"ds_read_b128 v[{br}:{br+3}], v20 offset:{CV_UB+480+512*r-32*d0}")
        return L
    def base_reads(q):
        t = q % 2
        return [f"ds_read_b64 v[{TU+2*t}:{TU+2*t+1}], v21 offset:{CV_UB+512+512*q}",
                f"ds_read_b64 v[{TX+2*t}:{TX+2*t+1}], v21 offset:{CV_XB+512*q}"]
    def base_calc(q):
        t = q % 2; L = []; b = BASE + 4*q
        for e in range(4):
            L.append(f"v_fma_mix_f32 v{b+e}, v{TU+2*t+e//2}, s20, 0 op_sel:[{e%2},0,0] op_sel_hi:[1,0,0]")
        for e in range(4):
            L.append(f"v_cvt_pk_bf16_f32 v{b+e}, 0, v{b+e}")
        for e in range(4):
            L.append(f"v_lshlrev_b32 v{TU+4+e}, 16, v{TX+2*t+e//2}" if e % 2 == 0 else f"v_and_b32 v{TU+4+e}, s23, v{TX+2*t+e//2}")
        for e in range(4):
            L.append(f"v_add_f32 v{b+e}, v{b+e}, v{TU+4+e}")
        return L
    def epi(qp):
        L = []; o = OUT + 4*(qp % 2)
        for t in range(2):
            q = 2*qp + t
            for e in range(4):
                L.append(f"v_fma_f32 v{BASE+4*q+e}, v{ACC+4*q+e}, s21, v{BASE+4*q+e}")
            L.append(f"v_cvt_pk_bf16_f32 v{o+2*t}, v{BASE+4*q}, v{BASE+4*q+1}")
            L.append(f"v_cvt_pk_bf16_f32 v{o+2*t+1}, v{BASE+4*q+2}, v{BASE+4*q+3}")
        L.append(f"v_permlane16_swap_b32 v{o}, v{o+2}")
        L.append(f"v_permlane16_swap_b32 v{o+1}, v{o+3}")
        L.append(f"buffer_store_dwordx4 v[{o}:{o+3}], v22, s[28:31], s27 offen offset:{1024*qp} sc1")
        return L
    for l in reads(0): a(l)
    for it in range(8):
        st = it % 2
        order = range(8) if it == 0 else range(7, -1, -1)
        mf = []
        for q in order:
            for r in range(q + 1):
                w = q - r
                c = "0" if (it == 0 and r == 0) else f"v[{ACC+4*q}:{ACC+4*q+3}]"
                mf.append((q, r, f"v_mfma_f32_16x16x32_f16 v[{ACC+4*q}:{ACC+4*q+3}], v[{AF[st]+4*r}:{AF[st]+4*r+3}], v[{BF[st]+4*w}:{BF[st]+4*w+3}], {c}"))
        fill = []
        if 1 <= it <= 4:
            fill_v = base_calc(2*(it-1)) + base_calc(2*(it-1)+1)
        else: fill_v = []
        rd = reads(it+1) if it < 7 else []
        tail = (base_reads(2*it) + base_reads(2*it+1)) if it < 4 else []
        if it > 0: a("s_waitcnt lgkmcnt(0)")
        done = {}
        for n, (q, r, m) in enumerate(mf):
            if it == 0 and r == 0:
                a(f"s_waitcnt lgkmcnt({min(15, 3*(7-q))})" if q < 7 else "s_waitcnt lgkmcnt(0)")
            a(m)
            if it == 0:
                if q == 7:
                    for _ in range(4):
                        if rd: a(rd.pop(0))
                        elif tail: a(tail.pop(0))
                continue
            if rd: a(rd.pop(0))
            if fill_v: a(fill_v.pop(0))
            elif not rd and tail: a(tail.pop(0))
            if it == 7:
                if n == 15 + 1: fill_v = epi(3)
                if n == 26 + 1: fill_v = fill_v + epi(2)
                if fill_v: a(fill_v.pop(0))
        for l in rd + fill_v + tail: a(l)
    for l in epi(1) + epi(0): a(l)
    a("s_endpgm")

def role_prep_wd():
    a(f"""s_load_dwordx2 s[4:5], s[0:1], 80
s_load_dwordx2 s[6:7], s[0:1], 104
v_lshrrev_b32 v1, 6, v0
v_and_b32 v2, 63, v0
v_readfirstlane_b32 s16, v1
v_lshlrev_b32 v3, 4, v2
s_mul_i32 s17, s16, 18432
s_mul_i32 s18, s3, 73728
s_add_u32 s18, s18, s17
s_waitcnt lgkmcnt(0)""")
    a.srd(8, 4, 4608*1152)
    for j in range(18):
        if j % 4 == 0:
            a("s_mov_b32 m0, s17")
        a(f"buffer_load_dwordx4 v3, s[8:11], s18 offen offset:{1024*(j%4)} lds")
        if j % 4 == 3:
            a("s_add_u32 s17, s17, 4096\ns_add_u32 s18, s18, 4096")
    ws_srd(12, WD, WD_SZ, 6)
    a(f"""v_lshrrev_b32 v4, 4, v2
v_bfe_u32 v5, v2, 2, 2
v_lshl_add_u32 v4, v4, 3, v5
v_mul_u32_u24 v4, 1152, v4
s_mul_i32 s19, s16, 288
v_add_u32 v4, s19, v4
v_and_b32 v5, 3, v2
v_lshl_add_u32 v6, v5, 4, v4
v_lshrrev_b32 v7, 1, v5
v_mul_u32_u24 v7, 36864, v7
v_add_u32 v7, v7, v4
v_and_b32 v5, 1, v5
v_lshl_add_u32 v7, v5, 3, v7
s_lshl_b32 s20, s16, 1
s_mul_i32 s20, s20, 72
s_add_u32 s20, s20, s3
s_mul_i32 s20, s20, 9216
s_waitcnt vmcnt(0)
s_barrier""")
    fr = [(i, fi) for i in range(2) for fi in range(9)]
    def rd(n):
        i, fi = fr[n]; r = 16 + 4*n
        if fi < 8:
            off = 144*i + 36864*(fi >> 2) + 64*((fi & 3) >> 1) + 8*(fi & 1); v = 6
        else:
            off = 144*i + 128; v = 7
        a(f"ds_read_b64_tr_b16 v[{r}:{r+1}], v{v} offset:{off}")
        a(f"ds_read_b64_tr_b16 v[{r+2}:{r+3}], v{v} offset:{off+4608}")
    for n in range(6): rd(n)
    for n in range(18):
        i, fi = fr[n]; r = 16 + 4*n
        if n + 6 < 18: rd(n + 6)
        a(f"s_waitcnt lgkmcnt({2*min(6, 17-n)})")
        a(f"buffer_store_dwordx4 v[{r}:{r+3}], v3, s[12:15], s20 offen sc1")
        a(f"s_add_u32 s20, s20, {1024 if fi < 8 else 72*9216 - 8*1024}")
    a("s_endpgm")

class Cnt:
    def __init__(self, name, mx):
        self.name = name; self.mx = mx; self.n = 0; self.pos = {}; self.done = 0
    def issue(self, tag=None):
        self.n += 1
        if tag is not None: self.pos[tag] = self.n
    def wait(self, tag):
        p = self.pos[tag]
        if p <= self.done: return
        k = min(self.n - p, self.mx)
        a(f"s_waitcnt {self.name}({k})")
        self.done = self.n - k
    def wait_all(self):
        if self.done < self.n:
            a(f"s_waitcnt {self.name}(0)"); self.done = self.n

def code_prefetch(vtmp, vdst, nbytes, stmp=90):
    L = a.label("PF")
    a(f"s_getpc_b64 s[{stmp}:{stmp+1}]")
    a(f"{L}:")
    a(f"v_lshlrev_b32 v{vtmp}, 7, v0")
    a(f"v_min_u32 v{vtmp}, {nbytes}-{L}, v{vtmp}")
    a(f"global_load_dword v{vdst}, v{vtmp}, s[{stmp}:{stmp+1}]")

G1_NM = 147456
def gemm1():
    vm = Cnt("vmcnt", 63); lg = Cnt("lgkmcnt", 15)
    a("s_cmp_ge_u32 s2, 256\ns_cbranch_scc0 G1_GO\ns_endpgm\nG1_GO:")
    a("""s_load_dwordx2 s[4:5], s[0:1], 104
v_lshrrev_b32 v1, 6, v0
v_and_b32 v2, 63, v0
v_readfirstlane_b32 s28, v1
s_and_b32 s30, s2, 7
s_lshl_b32 s30, s30, 1
s_bfe_u32 s29, s2, 0x10003
s_add_u32 s30, s30, s29
s_lshr_b32 s29, s2, 4""")
    a("""v_lshrrev_b32 v5, 4, v2
v_bfe_u32 v6, v2, 1, 3
v_and_b32 v7, 1, v2
v_xor_b32 v8, v6, v5
v_lshl_or_b32 v3, v8, 1, v7
v_lshlrev_b32 v3, 4, v3
v_lshl_add_u32 v3, v5, 12, v3
v_xor_b32 v8, 4, v8
v_lshl_or_b32 v4, v8, 1, v7
v_lshlrev_b32 v4, 4, v4
v_lshl_add_u32 v4, v5, 12, v4
v_add_u32 v4, 15360, v4
v_lshlrev_b32 v9, 4, v2
s_lshl_b32 s32, s28, 15
s_lshl_b32 s33, s29, 8
s_add_u32 s32, s32, s33
s_lshl_b32 s33, s28, 11
s_mul_i32 s31, s30, 12
s_mul_i32 s34, s28, 3
s_add_u32 s31, s31, s34
s_mul_i32 s35, s31, 3
s_mul_i32 s31, s31, 55296
s_waitcnt lgkmcnt(0)""")
    ws_srd(8, HT, HT_SZ, 4)
    ws_srd(12, WGU, WGU_SZ, 4)
    WD_ = 8
    HR = 8; HLA = 4
    WR = 0; HFR = 12*WD_
    ACC = (64, 160)
    def hdma(ks):
        a("s_mov_b32 m0, s33")
        a("buffer_load_dwordx4 v3, s[8:11], s32 offen lds"); vm.issue()
        a("buffer_load_dwordx4 v4, s[8:11], s32 offen offset:1024 lds"); vm.issue(("h", ks))
        a("s_add_u32 s33, s33, 8192\ns_add_u32 s32, s32, 131072")
    def wload(g, t):
        r = WR + 12*(g % WD_) + 4*t
        a(f"buffer_load_dwordx4 a[{r}:{r+3}], v9, s[12:15], s31 offen offset:{1024*t}"); vm.issue(("w", g, t))
        if t == 2: a("s_add_u32 s31, s31, 3072")
    L0 = 3
    for ks in range(L0):
        hdma(ks)
        for t in range(3): wload(ks, t)
    code_prefetch(1, 27, "G1_END"); vm.issue()
    ws_srd(16, HID, HID_SZ, 4)
    ws_srd(20, CS, CS_SZ, 4)
    ws_srd(24, RS2, 8192, 4)
    a("""v_lshrrev_b32 v5, 2, v2
v_and_b32 v6, 7, v5
v_lshlrev_b32 v5, 8, v5
v_and_b32 v7, 3, v2
v_lshl_add_u32 v5, v7, 3, v5""")
    for mt in range(8):
        a(f"v_xor_b32 v7, {mt}, v6\nv_lshl_add_u32 v{10+mt}, v7, 5, v5")
    a("""s_lshl_b32 s36, s28, 1
v_xor_b32 v7, s36, v6
v_lshl_add_u32 v18, v7, 5, v5
v_xor_b32 v19, 32, v18
s_mov_b32 s50, 0x3f803f80
v_mov_b32 v20, 0
v_mov_b32 v21, 0
v_mov_b32 v22, 0
v_mov_b32 v23, 0""")
    a(f"""v_and_b32 v5, 15, v2
v_lshrrev_b32 v6, 4, v2
v_lshlrev_b32 v24, 10, v6
v_lshl_add_u32 v24, v5, 4, v24
v_and_b32 v7, 3, v2
v_mul_u32_u24 v25, 36864, v7
v_lshl_add_u32 v25, v6, 4, v25
v_lshlrev_b32 v26, 2, v5
v_add_u32 v26, {G1_NM}, v26
s_mul_i32 s37, s29, {2*589824}
s_lshl_b32 s51, s35, 6""")
    for j in range(9):
        a(f"""s_add_u32 s38, s35, {j}
s_lshr_b32 s39, s38, 2
s_lshl_b32 s39, s39, 12
s_and_b32 s38, s38, 3
s_lshl_b32 s38, s38, 8
s_add_u32 s39, s39, s38
s_add_u32 s{40+j}, s39, s37
s_add_u32 s{60+j}, s{40+j}, 589824""")
    NM = 28
    CSR = 36
    XT = (48, 52)
    ST = 48
    def hread(n):
        g, mt = divmod(n, 8); ks = g % 18
        r = HFR + 4*(n % HR); off = (ks % 8)*8192
        def f1():
            a(f"ds_read_b64_tr_b16 a[{r}:{r+1}], v{10+mt} offset:{off}"); lg.issue()
        def f2():
            a(f"ds_read_b64_tr_b16 a[{r+2}:{r+3}], v{10+mt} offset:{off+4096}"); lg.issue(("h", n))
        L = [f1, f2]
        if ks in (7, 15): L.append(lambda: a(f"v_add_u32 v{10+mt}, 0x10000, v{10+mt}"))
        if ks == 17: L.append(lambda: a(f"v_subrev_u32 v{10+mt}, 0x20000, v{10+mt}"))
        return L
    def stats_reads(ks):
        L = []; off = (ks % 8)*8192
        for i in range(2):
            r = ST + 8*(ks % 2) + 4*i
            def f(r=r, i=i):
                a(f"ds_read_b64_tr_b16 v[{r}:{r+1}], v{18+i} offset:{off}"); lg.issue()
            def f2(r=r, i=i):
                a(f"ds_read_b64_tr_b16 v[{r+2}:{r+3}], v{18+i} offset:{off+4096}"); lg.issue(("s", ks, i))
            L += [f, f2]
            if ks in (7, 15): L.append(lambda i=i: a(f"v_add_u32 v{18+i}, 0x10000, v{18+i}"))
        return L
    def stats_calc(ks):
        L = []
        for i in range(2):
            r = ST + 8*(ks % 2) + 4*i
            for q in range(4):
                def f(r=r, q=q, i=i):
                    if q == 0: lg.wait(("s", ks, i))
                    a(f"v_dot2_f32_bf16 v{20+i}, v{r+q}, s50, v{20+i}")
                def f2(r=r, q=q, i=i):
                    a(f"v_dot2_f32_bf16 v{22+i}, v{r+q}, v{r+q}, v{22+i}")
                L += [f, f2]
        return L
    def I(s): return lambda: a(s)
    def stats_fin():
        L = []
        for r in (20, 21, 22, 23):
            L += [I(f"v_mov_b32 v56, v{r}"), I(f"v_permlane16_swap_b32 v{r}, v56"), I(f"v_add_f32 v{r}, v{r}, v56"),
                  I(f"v_mov_b32 v56, v{r}"), I(f"v_permlane32_swap_b32 v{r}, v56"), I(f"v_add_f32 v{r}, v{r}, v56")]
        L += [I("v_and_b32 v56, 16, v2"), I("v_cmp_eq_u32 vcc, 0, v56"), I("v_cndmask_b32 v20, v21, v20, vcc"), I("v_cndmask_b32 v22, v23, v22, vcc"),
              I("v_mul_f32 v20, 0x3ae38e39, v20"), I("v_mul_f32 v22, 0x3ae38e39, v22"), I("v_fma_f32 v22, -v20, v20, v22"),
              I("v_max_f32 v22, 0, v22"), I("v_cvt_pk_bf16_f32 v20, 0, -v20"),
              I("v_and_b32 v56, 31, v2"), I("v_lshlrev_b32 v56, 2, v56"), I("s_lshl_b32 s38, s28, 7"), I("v_add_u32 v56, s38, v56"),
              I(f"v_add_u32 v57, {G1_NM}, v56")]
        def w():
            a("ds_write_b32 v57, v20"); lg.issue(("nmw",))
        L.append(w)
        L += [I("v_cvt_pk_bf16_f32 v22, 0, v22"), I("v_add_f32 v22, 0x3727c5ac, v22"), I("v_cvt_pk_bf16_f32 v22, 0, v22"),
              I("v_sqrt_f32 v22, v22"), I("v_cvt_pk_bf16_f32 v22, 0, v22"), I("v_mul_f32 v22, v22, v22"), I("v_rcp_f32 v22, v22"),
              I("s_lshl_b32 s38, s29, 9"), I("s_cmp_eq_u32 s30, 0"), I("s_cselect_b32 s38, s38, 8192")]
        def st():
            a("buffer_store_dword v22, v56, s[24:27], s38 offen"); vm.issue()
        L.append(st)
        def bar():
            lg.wait(("nmw",)); a("s_barrier")
        L.append(bar)
        for mt in range(8):
            def rd(mt=mt):
                a(f"ds_read_b32 v{NM+mt}, v26 offset:{64*mt}"); lg.issue(("nm", mt))
            L.append(rd)
        return L
    def cs_load(p):
        L = []
        for t in range(3):
            def f(t=t):
                a(f"buffer_load_dwordx4 v[{CSR+4*t}:{CSR+4*t+3}], v25, s[20:23], s51 offen offset:{64*(3*p+t)}"); vm.issue(("cs", p, t))
            L.append(f)
        return L
    def cs_sum(p):
        L = []
        for perm in ("[1,0,3,2]", "[2,3,0,1]"):
            for r in range(12):
                def f(r=r, perm=perm):
                    vm.wait(("cs", p, r // 4))
                    a(f"v_add_f32_dpp v{CSR+r}, v{CSR+r}, v{CSR+r} quad_perm:{perm} row_mask:0xf bank_mask:0xf")
                L.append(f)
        return L
    def accr(p, t, mt): return ACC[p % 2] + 4*(8*t + mt)
    def epilogue(p):
        L = []; cnt = 0
        for t in range(3):
            for mq in range(2):
                X = XT[cnt % 2]; cnt += 1
                for m in range(4):
                    mt = 4*mq + m; c = accr(p, t, mt)
                    for e in range(4):
                        def f(c=c, e=e, t=t, mt=mt):
                            if p == 0: lg.wait(("nm", mt))
                            a(f"v_fmac_f32 v{c+e}, v{CSR+4*t+e}, v{NM+mt}")
                        L.append(f)
                    L += [I(f"v_mul_f32 v{c}, v{c}, v{c+2}"), I(f"v_mul_f32 v{c+1}, v{c+1}, v{c+3}"),
                          I(f"v_cvt_pk_bf16_f32 v{X+m}, v{c}, v{c+1}")]
                L += [I(f"v_permlane32_swap_b32 v{X}, v{X+2}"), I(f"v_permlane32_swap_b32 v{X+1}, v{X+3}"),
                      I(f"v_permlane16_swap_b32 v{X}, v{X+1}"), I(f"v_permlane16_swap_b32 v{X+2}, v{X+3}")]
                def st(X=X, t=t, mq=mq):
                    a(f"buffer_store_dwordx4 v[{X}:{X+3}], v24, s[16:19], s{(40 if mq == 0 else 60)+3*p+t} offen sc1"); vm.issue()
                L.append(st)
        return L
    hbar = {}
    groups = [[0], [1], [2], [3, 4], [5, 6], [7, 8], [9, 10], [11, 12], [13, 14], [15, 16, 17]]
    for gsub in groups: hbar[gsub[0]] = gsub[-1]
    def need_h(ks):
        if ks in hbar:
            vm.wait(("h", hbar[ks])); a("s_barrier"); del hbar[ks]
    nextw = L0; nexth = L0
    need_h(0)
    for n in range(HLA):
        for f in hread(n): f()
    bg = []
    for g in range(54):
        p, ks = divmod(g, 18)
        if ks == 0:
            if p == 1: bg = stats_calc(17) + stats_fin() + epilogue(0)
            if p == 2: bg = epilogue(1)
        if ks == 4 and p == 0: bg = bg + cs_load(0)
        if ks == 8 and p == 0: bg = bg + cs_sum(0)
        if ks == 13 and p >= 1: assert not bg, len(bg); bg = cs_load(p)
        if ks == 16 and p >= 1: bg = bg + cs_sum(p)
        fl = []
        if p == 0:
            nh = 2 if ks >= 1 else 1
            for _ in range(nh):
                if nexth < 18:
                    fl.append(lambda k=nexth: hdma(k)); nexth += 1
        la = min(WD_ - 1, L0 + (g // 3 if p == 0 else WD_))
        nw = 0
        while nextw < 54 and nextw <= g + la and nw < 2:
            for t in range(3): fl.append(lambda gg=nextw, t=t: wload(gg, t))
            nextw += 1; nw += 1
        if p == 0:
            fl += stats_reads(ks)
            if ks >= 1: fl += stats_calc(ks - 1)
        nbg = -(-len(bg) // max(1, (12 - ks))) if ks < 12 else len(bg)
        fl += bg[:nbg]; bg = bg[nbg:]
        slots = 24
        for mt in range(8):
            n = g*8 + mt
            hr = []
            if n + HLA < 54*8:
                g2 = (n + HLA) // 8
                if g2 < 18 and (n + HLA) % 8 == 0: need_h(g2)
                hr = hread(n + HLA)
            for t in range(3):
                if mt == 0: vm.wait(("w", g, t))
                if t == 0: lg.wait(("h", n))
                c = accr(p, t, mt); wr = WR + 12*(g % WD_) + 4*t; h = HFR + 4*(n % HR)
                a(f"v_mfma_f32_16x16x32_bf16 v[{c}:{c+3}], a[{wr}:{wr+3}], a[{h}:{h+3}], {'0' if ks == 0 else f'v[{c}:{c+3}]'}")
                if hr: hr.pop(0)()
                k = -(-len(fl) // slots)
                for _ in range(k): fl.pop(0)()
                slots -= 1
            for f in hr: f()
        assert not fl
    for f in bg + epilogue(2): f()
    a("G1_END:")
    a("s_endpgm")

G2_HI = 61440
def gemm2():
    vm = Cnt("vmcnt", 63); lg = Cnt("lgkmcnt", 15)
    a("s_cmp_ge_u32 s2, 256\ns_cbranch_scc0 G2_GO\ns_endpgm\nG2_GO:")
    a("""s_load_dwordx2 s[4:5], s[0:1], 104
s_load_dwordx2 s[6:7], s[0:1], 88
v_lshrrev_b32 v1, 6, v0
v_and_b32 v2, 63, v0
v_readfirstlane_b32 s28, v1
s_and_b32 s29, s2, 3
s_lshl_b32 s29, s29, 3
s_bfe_u32 s30, s2, 0x30003
s_add_u32 s29, s29, s30
s_and_b32 s30, s2, 4
s_lshr_b32 s31, s2, 6
s_add_u32 s30, s30, s31
v_lshlrev_b32 v3, 4, v2""")
    for j in range(4):
        a(f"""s_add_u32 s31, s28, {j}
s_and_b32 s31, s31, 3
s_lshl_b32 s32, s31, 10
v_add_u32 v{4+j}, s32, v3""")
        if j:
            a(f"s_mul_i32 s32, s31, 15360\ns_add_u32 s32, s32, {5120*(j-1)}\nv_add_u32 v{8+j}, s32, v3")
        else:
            a(f"s_mul_i32 s32, s31, 15360\nv_add_u32 v8, s32, v3")
    a(f"""s_mul_i32 s33, s29, 589824
s_mul_i32 s34, s28, {18*8192}
s_add_u32 s33, s33, s34
s_add_u32 s34, s33, 4096
s_mul_i32 s35, s30, 72
s_mul_i32 s36, s28, 18
s_add_u32 s35, s35, s36
s_mul_i32 s35, s35, 9216
s_add_u32 s36, s35, 4096
s_add_u32 s37, s35, 8192
s_waitcnt lgkmcnt(0)""")
    ws_srd(8, HID, HID_SZ, 4)
    ws_srd(12, WD, WD_SZ, 4)
    NR = 4; ACC = 32
    def R(kp, f):
        r = 128 + 68*(kp % NR) + 4*f
        return f"v[{r}:{r+3}]" if r < 256 else f"a[{r-256}:{r-253}]"
    def loads(kp):
        L = []
        def mk(s, tag=None, post=None):
            def f():
                a(s); vm.issue(tag)
                if post: a(post)
            return f
        for j in range(4): L.append(mk(f"buffer_load_dwordx4 {R(kp, j)}, v{4+j}, s[8:11], s33 offen"))
        for j in range(4): L.append(mk(f"buffer_load_dwordx4 {R(kp, 8+j)}, v3, s[12:15], s35 offen offset:{1024*j}"))
        L.append(mk(f"buffer_load_dwordx4 {R(kp, 16)}, v3, s[12:15], s37 offen", ("k", kp, 0),
                    "s_add_u32 s33, s33, 8192\ns_add_u32 s35, s35, 9216\ns_add_u32 s37, s37, 9216"))
        for j in range(4): L.append(mk(f"buffer_load_dwordx4 {R(kp, 4+j)}, v{4+j}, s[8:11], s34 offen"))
        for j in range(4): L.append(mk(f"buffer_load_dwordx4 {R(kp, 12+j)}, v3, s[12:15], s36 offen offset:{1024*j}", ("k", kp, 1),
                                       "s_add_u32 s34, s34, 8192\ns_add_u32 s36, s36, 9216" if j == 3 else None))
        return L
    LA = 2
    for f in loads(0): f()
    code_prefetch(1, 27, "G2_END"); vm.issue()
    for kp in range(1, LA):
        for f in loads(kp): f()
    ws_srd(16, HT, HT_SZ, 4)
    ws_srd(20, RS2, 8192, 4)
    a.srd(24, 6, 2048*1152)
    a(f"""v_lshrrev_b32 v12, 3, v2
v_lshlrev_b32 v12, 12, v12
v_and_b32 v13, 7, v2
v_lshl_add_u32 v12, v13, 4, v12
s_mul_i32 s38, s30, {72*4096}
s_lshl_b32 s39, s29, 7
s_add_u32 s38, s38, s39""")
    for i in range(3):
        if i < 2: a(f"s_add_u32 s39, s28, {4*i}")
        else: a("s_mov_b32 s39, 8")
        a(f"""s_lshl_b32 s40, s39, 10
s_add_u32 s40, s40, {G2_HI}
s_mov_b32 m0, s40
s_lshl_b32 s39, s39, 15
s_add_u32 s39, s39, s38
buffer_load_dwordx4 v12, s[16:19], s39 offen lds"""); vm.issue()
    a(f"""v_and_b32 v13, 15, v2
v_lshrrev_b32 v19, 4, v2
v_lshlrev_b32 v20, 2, v13
s_lshl_b32 s39, s29, 8
s_lshl_b32 s40, s28, 6
s_add_u32 s39, s39, s40
buffer_load_dword v14, v20, s[20:23], s39 offen"""); vm.issue()
    a(f"""v_lshrrev_b32 v20, 2, v13
v_and_b32 v21, 3, v13
v_lshlrev_b32 v22, 7, v20
v_lshl_add_u32 v22, v21, 3, v22
s_lshl_b32 s40, s28, 5
s_add_u32 s40, s40, {G2_HI}
v_add_u32 v22, s40, v22
v_lshl_add_u32 v15, v19, 10, v22
v_and_b32 v21, 1, v19
v_lshl_add_u32 v16, v21, 9, v22
v_mul_u32_u24 v17, 1152, v13
v_lshl_add_u32 v18, v21, 3, v17
v_lshl_add_u32 v17, v19, 4, v17
v_mov_b32 v23, 0x7ff00000
v_cmp_gt_u32 vcc, 32, v2
v_cndmask_b32 v18, v23, v18, vcc
s_lshl_b32 s41, s29, 2
s_add_u32 s41, s41, s28
s_mul_i32 s41, s41, {16*1152}
s_mul_i32 s42, s30, 144
s_add_u32 s41, s41, s42
s_mov_b32 s43, 0xffff0000""")
    def acc(j, t): return ACC + 4*(6*j + t)
    for kp in range(18):
        fl = loads(kp + LA) if kp + LA < 18 else []
        slots = 40
        for st in range(2):
            vm.wait(("k", kp, st))
            for j in range(4):
                for t in range(5):
                    tt = t if t < 4 else 4 + st
                    c = acc(j, tt); first = kp == 0 and (st == 0 or t == 4)
                    wf = R(kp, 8 + 4*st + t) if t < 4 else R(kp, 16)
                    a(f"v_mfma_f32_16x16x32_bf16 v[{c}:{c+3}], {wf}, {R(kp, 4*st+j)}, {'0' if first else f'v[{c}:{c+3}]'}")
                    if fl and slots % 2 == 0: fl.pop(0)()
                    slots -= 1
        assert not fl
    for j in (1, 2, 3, 0):
        for e in range(4):
            a(f"v_cndmask_b32 v{acc(j,4)+e}, v{acc(j,5)+e}, v{acc(j,4)+e}, vcc")
        if j:
            for t in range(5):
                a(f"ds_write_b128 v{8+j}, v[{acc(j,t)}:{acc(j,t)+3}] offset:{1024*t}")
    a("s_waitcnt vmcnt(0) lgkmcnt(0)\ns_barrier")
    P = 128; H = 192
    for t in range(5):
        for j in range(3):
            a(f"ds_read_b128 v[{P+4*(3*t+j)}:{P+4*(3*t+j)+3}], v8 offset:{5120*j+1024*t}"); lg.issue(("p", t))
        if t < 4: a(f"ds_read_b64_tr_b16 v[{H+2*t}:{H+2*t+1}], v15 offset:{(32*(t>>1)+4*(t&1))*128}")
        else: a(f"ds_read_b64_tr_b16 v[{H+8}:{H+9}], v16 offset:{64*128}")
        lg.issue(("hh", t))
    O = 208
    for t in range(5):
        lg.wait(("hh", t))
        c = acc(0, t); p = P + 12*t
        for e in range(4):
            a(f"v_add_f32 v{c+e}, v{c+e}, v{p+e}")
            a(f"v_add_f32 v{p+4+e}, v{p+4+e}, v{p+8+e}")
        for e in range(4):
            a(f"v_add_f32 v{c+e}, v{c+e}, v{p+4+e}")
        if t == 4:
            for e in range(4): a(f"v_mov_b32 v{p+e}, v{c+e}")
            for e in range(4): a(f"v_permlane32_swap_b32 v{c+e}, v{p+e}")
            for e in range(4): a(f"v_add_f32 v{c+e}, v{c+e}, v{p+e}")
        for e in range(4): a(f"v_mul_f32 v{c+e}, v{c+e}, v14")
        for e in range(4): a(f"v_cvt_pk_bf16_f32 v{c+e}, 0, v{c+e}")
        for e in range(4):
            hs = H + 2*t + e//2
            a(f"v_lshlrev_b32 v{p+e}, 16, v{hs}" if e % 2 == 0 else f"v_and_b32 v{p+e}, s43, v{hs}")
        for e in range(4): a(f"v_add_f32 v{c+e}, v{c+e}, v{p+e}")
        a(f"v_cvt_pk_bf16_f32 v{O+2*t}, v{c}, v{c+1}")
        a(f"v_cvt_pk_bf16_f32 v{O+2*t+1}, v{c+2}, v{c+3}")
        if t in (1, 3):
            a(f"buffer_store_dwordx4 v[{O+2*t-2}:{O+2*t+1}], v17, s[24:27], s41 offen offset:{64*(t>>1)}")
        if t == 4:
            a(f"buffer_store_dwordx2 v[{O+8}:{O+9}], v18, s[24:27], s41 offen offset:128")
    a("G2_END:")
    a("s_endpgm")

def dispatch(roles):
    labs = []
    lo = 0
    for (cnt, fn, first) in roles:
        L = a.label("ROLE"); labs.append(L)
        a(f"s_sub_u32 s3, s2, {lo - first}" if lo - first >= 0 else f"s_add_u32 s3, s2, {first - lo}")
        a(f"s_cmp_lt_u32 s2, {lo + cnt}\ns_cbranch_scc1 {L}")
        lo += cnt
    a("s_endpgm")
    for L, (cnt, fn, first) in zip(labs, roles):
        a(f"{L}:")
        fn()
    return lo

HEADER = open("cdna_kernels/" + NAME + ".s.ref").read().split("; Override launch geometry")[0]

def build(path, upto=4):
    a.kernel("k1_kernel")
    n1 = dispatch([(128, role_ln1, 0), (288, role_kgen, 0), (72, role_prep_gu, 0)])
    a.desc("k1_kernel", 176, 64)
    a.launch("k1_kernel", n1, 256, 65536)
    a.kernel("k2_kernel")
    n2 = dispatch([(144, role_conv, 0), (72, role_prep_wd, 0), (144, role_prep_gu, 72)])
    a.desc("k2_kernel", 248, 64)
    a.launch("k2_kernel", n2, 256, 73728)
    a.kernel("k3_kernel")
    gemm1()
    a.desc("k3_kernel", 512, 100, accum=256)
    a.launch("k3_kernel", 256, 256, G1_NM + 512)
    a.kernel("k4_kernel")
    gemm2()
    a.desc("k4_kernel", 512, 100, accum=256)
    a.launch("k4_kernel", 256, 256, G2_HI + 9216)
    a.lines = fix(a.lines, True)
    open(path, "w").write(a.text(HEADER))

if __name__ == "__main__":
    build(sys.argv[1] if len(sys.argv) > 1 else "k.s")
```
